```python
import torch

def _softmax(x, axis=-1):
    return torch.softmax(x, dim=axis)

def _gelu(x):
    return torch.nn.functional.gelu(x, approximate='tanh')

def _silu(x):
    return torch.nn.functional.silu(x)

def _sigmoid(x):
    return torch.sigmoid(x)

def _layernorm(x, axis=-1, eps=1e-05):
    m = x.mean(dim=axis, keepdim=True)
    v = x.var(dim=axis, keepdim=True, unbiased=False)
    return (x - m) / torch.sqrt(v + eps)

def _scatter_add(tgt, idx, src, axis=0):
    return tgt.clone().index_add_(axis, idx, src)

def _segment_sum(src, seg, n):
    out = torch.zeros((n,) + src.shape[1:], dtype=src.dtype)
    return out.index_add_(0, seg, src)

def _pad(x, pw):
    flat = tuple((v for pair in reversed(pw) for v in pair))
    return torch.nn.functional.pad(x, flat)
kernel_name = 'adaLN_cond__grouped_kv_mqa__mixer_gmlp__prompt'

def setup_inputs():

    _w = lambda a: (lambda t: t.to(torch.bfloat16) if t.is_floating_point() else t)(torch.as_tensor(a))

    def _A_setup():
        B, S, D, H = (1, 2048, 576, 32)
        Dh = D // H
        return {'x': _w((lambda *s: torch.randn(*s, dtype=torch.bfloat16) * 0.05)(B, S, D)), 'wq': _w((lambda *s: torch.randn(*s, dtype=torch.bfloat16) * 0.05)(D, H * Dh)), 'wk': _w((lambda *s: torch.randn(*s, dtype=torch.bfloat16) * 0.05)(D, Dh)), 'wv': _w((lambda *s: torch.randn(*s, dtype=torch.bfloat16) * 0.05)(D, Dh)), 'wo': _w((lambda *s: torch.randn(*s, dtype=torch.bfloat16) * 0.05)(H * Dh, D))}
    _A_in = _A_setup()

    def _B_setup():
        B, S, D, F = (1, 2048, 576, 4608)
        Fh = F // 2
        return {'x': _w((lambda *s: torch.randn(*s, dtype=torch.bfloat16) * 0.05)(B, S, D)), 'w_in': _w((lambda *s: torch.randn(*s, dtype=torch.bfloat16) * 0.2)(D, 2 * Fh)), 'w_sp': _w(0.01 * (lambda *s: torch.randn(*s, dtype=torch.bfloat16) * 0.2)(S, S)), 'b_sp': _w(1.0 + 0.01 * (lambda *s: torch.randn(*s, dtype=torch.bfloat16) * 0.05)(S)), 'w_out': _w((lambda *s: torch.randn(*s, dtype=torch.bfloat16) * 0.05)(Fh, D))}
    _B_in = _B_setup()
    return {'A_x': _A_in['x'], 'A_wq': _A_in['wq'], 'A_wk': _A_in['wk'], 'A_wv': _A_in['wv'], 'A_wo': _A_in['wo'], 'B_x': _B_in['x'], 'B_w_in': _B_in['w_in'], 'B_w_sp': _B_in['w_sp'], 'B_b_sp': _B_in['b_sp'], 'B_w_out': _B_in['w_out'], 'c': _w((lambda *s: torch.randn(*s, dtype=torch.bfloat16) * 0.1)(1, 576) * 8.0), 'w_mod': _w((lambda *s: torch.randn(*s, dtype=torch.bfloat16) * 0.1)(576, 6 * 576) * 576 ** (-0.5) * 8.0)}

def reference(A_x, A_wq, A_wk, A_wv, A_wo, B_x, B_w_in, B_w_sp, B_b_sp, B_w_out, c, w_mod):

    def _A_ref(x, wq, wk, wv, wo):
        B, S, D = x.shape
        H = 32
        Dh = D // H
        q = (lambda x, *d: x.permute(*d))((x @ wq).reshape(B, S, H, Dh), 0, 2, 1, 3)
        k = x @ wk
        v = x @ wv
        scores = torch.einsum('bhqd,bkd->bhqk', q, k) * Dh ** (-0.5)
        p = _softmax(scores, axis=-1)
        o = torch.einsum('bhqk,bkd->bhqd', p, v)
        return (lambda x, *d: x.permute(*d))(o, 0, 2, 1, 3).reshape(B, S, H * Dh) @ wo

    def _B_ref(x, w_in, w_sp, b_sp, w_out):
        B, S, D = x.shape
        F = w_in.shape[-1]
        Fh = F // 2
        z = _gelu(torch.einsum('bsd,df->bsf', x, w_in))
        z1 = z[..., :Fh].clone()
        z2 = _layernorm(z[..., Fh:], axis=-1)
        g = torch.einsum('ts,bsf->btf', w_sp, z2) + b_sp[None, :, None]
        return torch.einsum('bsf,fd->bsd', z1 * g, w_out)
    x = A_x
    mod = (_silu(c) @ w_mod).reshape(c.shape[0], 6, 1, -1)
    sa, ca, ga, sb, cb, gb = (mod[:, 0].clone(), mod[:, 1].clone(), mod[:, 2].clone(), mod[:, 3].clone(), mod[:, 4].clone(), mod[:, 5].clone())
    h = _layernorm(x, axis=-1) * (1 + ca) + sa
    x = x + ga * _A_ref(h, A_wq, A_wk, A_wv, A_wo)
    h = _layernorm(x, axis=-1) * (1 + cb) + sb
    x = x + gb * _B_ref(h, B_w_in, B_w_sp, B_b_sp, B_w_out)
    return x
```

```python
import re

def v(i): return f"v{i}"
def vr(i, n): return f"v{i}" if n == 1 else f"v[{i}:{i+n-1}]"
def a(i): return f"a{i}"
def ar(i, n): return f"a{i}" if n == 1 else f"a[{i}:{i+n-1}]"
def s(i): return f"s{i}"
def sr(i, n): return f"s{i}" if n == 1 else f"s[{i}:{i+n-1}]"

TRANS = ("v_exp_f32", "v_log_f32", "v_rcp_f32", "v_rsq_f32", "v_sqrt_f32", "v_sin_f32", "v_cos_f32",
         "v_exp_f16", "v_rcp_f16", "v_rcp_iflag_f32")
PASSES = {"v_mfma_f32_32x32x16_bf16": 8, "v_mfma_f32_16x16x32_bf16": 4, "v_mfma_f32_32x32x4bf16_1k": 16,
          "v_mfma_f32_32x32x4_2b_bf16": 16}

_reg_re = re.compile(r"^(-|abs\(|\|)?([vas])(?:\[(\d+):(\d+)\]|(\d+))\)?\|?$")

def regs_of(op):
    op = op.strip()
    if op == "vcc": return {("s", 106), ("s", 107)}
    if op == "vcc_lo": return {("s", 106)}
    if op == "vcc_hi": return {("s", 107)}
    if op == "exec": return {("s", 126), ("s", 127)}
    if op == "exec_lo": return {("s", 126)}
    if op == "exec_hi": return {("s", 127)}
    if op == "m0": return {("s", 124)}
    m = _reg_re.match(op)
    if not m: return set()
    k = m.group(2)
    if m.group(3) is not None:
        return {(k, i) for i in range(int(m.group(3)), int(m.group(4)) + 1)}
    return {(k, int(m.group(5)))}

class Ins:
    __slots__ = ("text", "mn", "ops", "dst", "src", "kind", "label", "target", "srcC", "srcAB", "states", "flags")
    def __init__(self, text):
        self.text = text
        t = text.split(";")[0].strip()
        self.label = None; self.target = None
        self.dst = set(); self.src = set(); self.srcC = set(); self.srcAB = set()
        self.kind = "other"; self.states = 1; self.flags = ""
        if not t or t.startswith("."):
            self.mn = ""; self.kind = "none"; self.states = 0; return
        if t.endswith(":"):
            self.mn = ""; self.label = t[:-1]; self.kind = "label"; self.states = 0; return
        parts = t.split(None, 1)
        mn = parts[0]; self.mn = mn
        rest = parts[1] if len(parts) > 1 else ""
        ops = []; cur = ""; depth = 0
        for ch in rest:
            if ch == "[": depth += 1
            if ch == "]": depth -= 1
            if ch == "," and depth == 0:
                ops.append(cur.strip()); cur = ""
            else: cur += ch
        if cur.strip(): ops.append(cur.strip())
        if ops:
            last = ops[-1].split()
            ops[-1] = last[0]; self.flags = " ".join(last[1:])
        self.ops = ops
        R = [regs_of(o) for o in ops]
        base = mn.replace("_e32", "").replace("_e64", "").replace("_dpp", "").replace("_sdwa", "")
        if mn.startswith("v_mfma"):
            self.kind = "mfma"; self.dst = R[0]; self.srcAB = R[1] | R[2]; self.srcC = R[3] if len(R) > 3 else set()
            self.src = self.srcAB | self.srcC
        elif mn.startswith("v_"):
            self.kind = "trans" if base in TRANS else "valu"
            if base.startswith("v_permlane") and "swap" in base:
                self.dst = R[0] | R[1]; self.src = R[0] | R[1]
            elif base.startswith(("v_add_co", "v_sub_co", "v_addc_co", "v_subb_co", "v_mad_u64_u32")):
                self.dst = R[0] | R[1]; self.src = set().union(*R[2:])
            elif base == "v_nop":
                pass
            else:
                self.dst = R[0]; self.src = set().union(*R[1:]) if len(R) > 1 else set()
                if base.startswith(("v_fmac", "v_pk_fmac", "v_dot2c", "v_writelane")): self.src |= R[0]
                if "_dpp" in mn or "row_" in self.flags or "quad_perm" in self.flags:
                    self.src |= R[0]
                if base == "v_cndmask_b32" and len(ops) == 3: self.src |= regs_of("vcc")
        elif mn.startswith("ds_"):
            self.kind = "ds"
            if mn.startswith(("ds_read", "ds_bpermute", "ds_permute", "ds_swizzle")):
                self.dst = R[0]; self.src = set().union(*R[1:]) if len(R) > 1 else set()
            else:
                self.src = set().union(*R)
        elif mn.startswith(("buffer_", "global_", "flat_")):
            self.kind = "vmem"
            fl = self.flags.split()
            if "load" in mn and "lds" not in fl and "_lds_" not in mn:
                self.dst = R[0]; self.src = set().union(*R[1:])
            elif "atomic" in mn and "sc0" in fl:
                self.dst = R[0]; self.src = set().union(*R)
            else:
                self.src = set().union(*R) if R else set()
            if "lds" in fl or "_lds_" in mn: self.kind = "dma"
        elif mn.startswith("s_"):
            self.kind = "salu"
            if mn == "s_nop":
                self.states = int(ops[0], 0) + 1; self.kind = "nop"
            elif mn.startswith(("s_cbranch", "s_branch")):
                self.kind = "branch"; self.target = ops[0]
            elif mn == "s_endpgm": self.kind = "end"
            elif mn.startswith(("s_cmp", "s_waitcnt", "s_barrier", "s_setprio", "s_sleep", "s_bitcmp")):
                self.src = set().union(*R) if R else set()
            elif mn.startswith(("s_load", "s_buffer_load", "s_memtime", "s_memrealtime")):
                self.kind = "smem"; self.dst = R[0]; self.src = set().union(*R[1:]) if len(R) > 1 else set()
            else:
                self.dst = R[0]; self.src = set().union(*R[1:]) if len(R) > 1 else set()
                if "saveexec" in mn: self.dst |= regs_of("exec"); self.src |= regs_of("exec")
        else:
            raise ValueError("unknown instruction: " + text)

def need(p, c):
    n = 0
    pv = p.kind in ("valu", "trans")
    cv = c.kind in ("valu", "trans")
    vd = {r for r in p.dst if r[0] in "va"}
    sd = {r for r in p.dst if r[0] == "s"}
    cbase = c.mn
    if pv:
        if c.kind == "mfma" and vd & c.src: n = max(n, 2)
        if c.kind == "mfma" and sd & regs_of("exec"): n = max(n, 4)
        if p.kind == "trans" and c.kind == "valu" and vd & c.src: n = max(n, 1)
        if cv and (cbase.startswith(("v_readfirstlane", "v_readlane"))) and vd & c.src: n = max(n, 1)
        if cv and cbase.startswith("v_permlane") and vd & c.src: n = max(n, 2)
        if cv and ("_dpp" in cbase or "row_" in c.flags or "quad_perm" in c.flags) and vd & c.src: n = max(n, 2)
        if cv and sd & c.src:
            n = max(n, 4 if cbase.startswith(("v_readlane", "v_writelane")) else 2)
        if c.kind in ("vmem", "dma") and sd & c.src: n = max(n, 5)
        if cv and ("op_sel" in p.flags and not p.mn.startswith("v_pk") or "sdwa" in p.mn) and vd & (c.src | c.dst): n = max(n, 1)
        if c.kind in ("salu", "branch", "smem") and sd & c.src: n = max(n, 1)
        if c.kind == "branch" and c.mn in ("s_cbranch_vccz", "s_cbranch_vccnz") and sd & regs_of("vcc"): n = max(n, 5)
    if p.kind == "mfma":
        P = PASSES[p.mn]
        big = {2: 5, 4: 8, 8: 12, 16: 20}[P]
        if c.kind == "mfma":
            if p.dst & c.srcAB: n = max(n, big)
            if p.dst & c.srcC:
                if not (p.dst == c.srcC and PASSES[c.mn] == P): n = max(n, {2: 4, 4: 6, 8: 10, 16: 18}[P])
                elif P == 2: n = max(n, 2)
            elif p.dst & c.dst: n = max(n, big)
        elif c.kind in ("valu", "trans", "ds", "vmem", "dma"):
            if p.dst & (c.src | c.dst): n = max(n, big)
        if cv and p.srcC & c.dst: n = max(n, {2: 1, 4: 3, 8: 7, 16: 15}[P])
    if p.kind == "salu" and ("s", 124) in p.dst and c.kind == "dma": n = max(n, 1)
    if p.kind == "vmem" and "store" in p.mn and ("x4" in p.mn or "x3" in p.mn):
        data = regs_of(p.ops[0]) if p.mn.startswith("buffer") else regs_of(p.ops[1])
        if data & c.dst: n = max(n, 2 if cv else 1)
    return n

def autopad(lines, verbose=False):
    ins = [Ins(l) for l in lines]
    labels = {x.label: i for i, x in enumerate(ins) if x.label}
    preds = {}
    for i, x in enumerate(ins):
        if x.kind == "branch" and x.target in labels:
            preds.setdefault(labels[x.target], []).append(i)
    pad = [0] * len(ins)
    for i, c in enumerate(ins):
        if c.kind in ("none", "label", "nop", "end"): continue
        worst = 0
        stack = [(i - 1, 0, True)]
        seen = set()
        while stack:
            j, d, fall = stack.pop()
            while j >= 0 and d < 20:
                p = ins[j]
                if fall and (p.kind == "end" or p.mn == "s_branch"): break
                fall = True
                if (j, d) in seen: break
                seen.add((j, d))
                if p.kind == "label":
                    for b in preds.get(j, []): stack.append((b, d, False))
                if p.states:
                    nn = need(p, c)
                    if nn > d: worst = max(worst, nn - d)
                d += p.states + pad[j]
                j -= 1
        pad[i] = worst
        if worst and verbose: print(f"pad {worst} before: {c.text.strip()}")
    out = []
    for i, c in enumerate(ins):
        k = pad[i]
        while k > 0:
            t = min(k, 16); out.append(f"    s_nop {t-1}"); k -= t
        out.append(c.text)
    return out, sum(pad)

class K:
    def __init__(self, name):
        self.name = name; self.L = []; self._lab = 0
    def __call__(self, txt):
        for l in txt.strip("\n").split("\n"):
            l = l.strip()
            if l: self.L.append(l if l.endswith(":") else "    " + l)
    def label(self, n): self.L.append(f"{self.name}_{n}:")
    def lab(self, n): return f"{self.name}_{n}"
    def extend(self, lst):
        for l in lst: self(l)

def interleave(main, fill, lead=0):
    out = []
    n = len(main) - lead
    for j, m in enumerate(main):
        out.append(m)
        if j >= lead:
            lo = len(fill) * (j - lead) // n; hi = len(fill) * (j - lead + 1) // n
            out.extend(fill[lo:hi])
    return out

def resolve_waits(lines):
    vm = []; lg = []; out = []
    for l in lines:
        t = l.strip()
        if t.startswith("@vm") or t.startswith("@lg") or t.startswith("@both"):
            parts = t.split()
            res = []
            if parts[0] in ("@vm", "@both"):
                tags = parts[1].split(",")
                idx = [i for i, g in enumerate(vm) if g in tags]
                assert all(g in vm for g in tags), (t, "tag not issued")
                res.append(f"vmcnt({min(63, len(vm) - 1 - max(idx))})")
            if parts[0] in ("@lg", "@both"):
                tags = parts[-1].split(",")
                assert all(g in lg for g in tags), (t, "tag not issued")
                idx = [i for i, g in enumerate(lg) if g in tags]
                res.append(f"lgkmcnt({min(15, len(lg) - 1 - max(idx))})")
            out.append("    s_waitcnt " + " ".join(res))
            continue
        mn = t.split()[0] if t else ""
        tag = t.split("#")[1].strip() if "; #" in t else None
        if mn.startswith(("buffer_", "global_")): vm.append(tag)
        if mn.startswith("ds_"): lg.append(tag)
        if mn.startswith(("s_memtime", "s_memrealtime", "s_load")): lg.append(None); lg.append(None)
        out.append(l)
    return out
```

```python
import struct, math, os
OPT = set(os.environ.get('OPT', '').split(','))
from asmlib import *

def f2u(x): return struct.unpack("<I", struct.pack("<f", x))[0]
def fl(x): return f"0x{f2u(x):08x}"

KA = dict(x=0, wq=8, wk=16, wv=24, wo=32, bx=40, win=48, wsp=56, bsp=64, wout=72, c=80, wmod=88, out=96, dbg=104, ws=112)
NPART = 6
_ws = {}
_off = [0]
def _alloc(name, size):
    o = (_off[0] + 4095) // 4096 * 4096
    _ws[name] = (o, size); _off[0] = o + size
for n, sz in [("MODP", NPART * 3456 * 4), ("MODF", 3456 * 4), ("ABF", 72 * 32), ("XN", 128 * 18 * 1024),
              ("WQT", 8 * 18 * 5 * 1024), ("QM", 64 * 32 * 1024), ("QT", 64 * 32 * 128), ("KV", 148 * 1024),
              ("O", 128 * 18 * 1024), ("WOT", 8 * 18 * 4608), ("X2", 256 * 4 * 2560), ("X2S", 64 * 36 * 1024),
              ("ST2", 8 * 2048 * 8), ("WINT", 144 * 37 * 1024), ("WOUTT", 8 * 72 * 4608), ("Z1", 64 * 144 * 1024),
              ("ZN", 16 * 64 * 9 * 1024), ("EST", 16 * 16 * 128 * 8), ("Y", 128 * 72 * 1024), ("RSTD", 2048 * 4), ("TS", 10 * 1024 * 16 * 64)]:
    _alloc(n, sz)
WS = _ws
KV_KT = 65536
KV_V = 73728
LOG2E = 1.4426950408889634
QSCALE = 18 ** -0.5 * LOG2E

def srd(k, d, base, size):
    k(f"s_mov_b32 s{d}, s{base}\ns_and_b32 s{d+1}, s{base+1}, 0xffff\ns_mov_b32 s{d+2}, {size}\ns_mov_b32 s{d+3}, 0x20000")

def srd_ws(k, d, wsb, name, size=None):
    off, sz = WS[name]
    if size is not None: sz = size
    k(f"s_add_u32 s{d}, s{wsb}, {off}\ns_addc_u32 s{d+1}, s{wsb+1}, 0\ns_and_b32 s{d+1}, s{d+1}, 0xffff\ns_mov_b32 s{d+2}, {sz}\ns_mov_b32 s{d+3}, 0x20000")

def wave_lane(k, swave, vlane):
    k(f"v_lshrrev_b32 v{vlane}, 6, v0\nv_readfirstlane_b32 s{swave}, v{vlane}\nv_and_b32 v{vlane}, 63, v0")

def bf16_round(k, dst, src, tmp=None):
    k(f"v_cvt_pk_bf16_f32 v{dst}, v{src}, v{src}\nv_and_b32 v{dst}, 0xffff0000, v{dst}")

def unpack(k_list, dlo, dhi, src):
    k_list.append(f"v_lshlrev_b32 v{dlo}, 16, v{src}")
    k_list.append(f"v_and_b32 v{dhi}, 0xffff0000, v{src}")

def kernel_text(k, nvgpr, nsgpr=100, accum=None, verbose=False):
    lines, n = autopad(k.L, verbose)
    if accum is None: accum = (min(nvgpr, 256) + 3) // 4 * 4
    head = f".text\n.globl {k.name}\n.p2align 8\n.type {k.name},@function\n{k.name}:\n"
    body = "\n".join(lines) + "\n"
    desc = f""".section .rodata,"a"
.p2align 6
.amdhsa_kernel {k.name}
  .amdhsa_next_free_vgpr {nvgpr}
  .amdhsa_next_free_sgpr {nsgpr}
  .amdhsa_accum_offset {accum}
  .amdhsa_group_segment_fixed_size 0
  .amdhsa_kernarg_size 120
  .amdhsa_user_sgpr_count 2
  .amdhsa_user_sgpr_kernarg_segment_ptr 1
  .amdhsa_system_sgpr_workgroup_id_x 1
  .amdhsa_float_denorm_mode_32 3
.end_amdhsa_kernel
"""
    return head + body, desc, n

def magic(d, nmax, maxm=1 << 24):
    for sh in range(8, 31):
        m = -(-(1 << sh) // d)
        if m * nmax >= (1 << 32) or m >= maxm: break
        if all((n * m) >> sh == n // d for n in range(nmax + 1)): return m, sh
    raise ValueError

def stamp(k, i, real=False):
    if 'ts' not in OPT: return
    k(f"{'s_memrealtime' if real else 's_memtime'} s[96:97]\ns_waitcnt lgkmcnt(0)\ns_mov_b32 s{80+i}, s96")
def stamp_flush(k, kid, swave, wsb):
    if 'ts' not in OPT: return
    k("s_mov_b64 exec, -1")
    srd_ws(k, 76, wsb, "TS")
    k(f"s_lshl_b32 s96, s2, 4\ns_add_u32 s96, s96, s{swave}\ns_lshl_b32 s96, s96, 6\ns_add_u32 s96, s96, {kid*1024*16*64}")
    for i in range(16):
        k(f"v_mov_b32 v2, s{80+i}\nv_mov_b32 v3, 0\nbuffer_store_dword v2, v3, s[76:79], s96 offen offset:{4*i}")

def stamp_init(k):
    if 'ts' not in OPT: return
    for i in range(16): k(f"s_mov_b32 s{80+i}, 0")
    stamp(k, 0, True); stamp(k, 1)
def stamp_end(k, kid, i, swave=3, wsb=20):
    if 'ts' not in OPT: return
    k("s_waitcnt vmcnt(0)")
    stamp(k, i); stamp(k, 15, True); stamp_flush(k, kid, swave, wsb)

def e_tiles(cb):
    u, odd = cb >> 1, cb & 1
    z2 = range(9 * u + 5, 9 * u + 9) if odd else range(9 * u, 9 * u + 5)
    z1 = range(9 * u + 4, 9 * u + 9) if odd else range(9 * u, 9 * u + 4)
    return [72 + t for t in z2] + list(z1)
```

```python
from common import *

NB_MOD, NB_XN, NB_WQ = 324, 128, 180
K1_GRID = NB_MOD + NB_XN + NB_WQ
K1_LDS = 8192

def gen_k1():
    k = K("k1_prep_kernel")
    k(f"s_cmp_ge_u32 s2, {K1_GRID}\ns_cbranch_scc1 {k.lab('end')}")
    k("s_load_dwordx8 s[8:15], s[0:1], 0\ns_load_dwordx4 s[16:19], s[0:1], 80\ns_load_dwordx2 s[20:21], s[0:1], 112")
    stamp_init(k)
    wave_lane(k, 3, 1)
    k(f"s_cmp_ge_u32 s2, {NB_MOD + NB_XN}\ns_cbranch_scc1 {k.lab('wq')}")
    k(f"s_cmp_ge_u32 s2, {NB_MOD}\ns_cbranch_scc1 {k.lab('xn')}")
    k("""
    s_mul_i32 s4, s2, 1214
    s_lshr_b32 s4, s4, 16          ; kq
    s_mul_i32 s5, s4, 54
    s_sub_u32 s5, s2, s5           ; cg
    s_mul_i32 s6, s4, 96
    s_mul_i32 s7, s3, 24
    s_add_u32 s6, s6, s7           ; row0
    s_mul_i32 s36, s6, 6912
    s_lshl_b32 s7, s5, 7
    s_add_u32 s36, s36, s7
    s_lshl_b32 s37, s6, 1
    v_lshrrev_b32 v2, 3, v1        ; r8
    v_and_b32 v3, 7, v1
    v_mul_u32_u24 v4, 6912, v2
    v_lshl_add_u32 v4, v3, 4, v4
    v_lshlrev_b32 v5, 1, v2
    s_waitcnt lgkmcnt(0)
    """)
    srd(k, 24, 18, 576 * 3456 * 2)
    srd(k, 28, 16, 576 * 2)
    for i in range(3):
        k(f"buffer_load_dwordx4 {vr(16+4*i,4)}, v4, s[24:27], s36 offen")
        if i < 2: k(f"s_add_u32 s36, s36, {8*6912}")
    for i in range(3):
        k(f"buffer_load_ushort v{8+i}, v5, s[28:31], s37 offen offset:{16*i}")
    srd_ws(k, 32, 20, "MODP")
    stamp(k, 2)
    k("s_waitcnt vmcnt(0)")
    stamp(k, 3)
    for i in range(3):
        k(f"v_lshlrev_b32 v{8+i}, 16, v{8+i}")
    for i in range(3):
        k(f"v_mul_f32 v{11+i}, {fl(-LOG2E)}, v{8+i}")
    for i in range(3):
        k(f"v_exp_f32 v{11+i}, v{11+i}")
    for i in range(3):
        k(f"v_add_f32 v{11+i}, 1.0, v{11+i}")
    for i in range(3):
        k(f"v_rcp_f32 v{11+i}, v{11+i}")
    for i in range(3):
        k(f"v_mul_f32 v{8+i}, v{8+i}, v{11+i}")
    for i in range(3):
        bf16_round(k, 8 + i, 8 + i)
    for i in range(3):
        for j in range(4):
            l = []; unpack(l, 40 + 2 * j, 41 + 2 * j, 16 + 4 * i + j); k.extend(l)
        for j in range(8):
            if i == 0: k(f"v_mul_f32 v{32+j}, v{8}, v{40+j}")
            else: k(f"v_fmac_f32 v{32+j}, v{8+i}, v{40+j}")
    k("""
    v_lshlrev_b32 v6, 5, v0
    ds_write_b128 v6, v[32:35]
    ds_write_b128 v6, v[36:39] offset:16
    s_waitcnt lgkmcnt(0)
    s_barrier
    s_cmp_lg_u32 s3, 0
    """)
    k(f"s_cbranch_scc1 {k.lab('end')}")
    k("v_lshlrev_b32 v6, 2, v1")
    for i in range(16):
        k(f"ds_read2st64_b32 {vr(48+2*i,2)}, v6 offset0:{2*i} offset1:{2*i+1}")
    k("""
    s_mul_i32 s36, s4, 13824
    s_lshl_b32 s7, s5, 8
    s_add_u32 s36, s36, s7
    s_waitcnt lgkmcnt(0)
    """)
    n = 16
    while n >= 2:
        n //= 2
        for i in range(n):
            k(f"v_pk_add_f32 {vr(48+2*i,2)}, {vr(48+2*i,2)}, {vr(48+2*(i+n),2)}")
    k("v_add_f32 v48, v48, v49\nbuffer_store_dword v48, v6, s[32:35], s36 offen")
    stamp(k, 4); stamp_end(k, 0, 5)
    k("s_endpgm")

    k.label("xn")
    k(f"""
    s_sub_u32 s4, s2, {NB_MOD}
    s_mul_i32 s36, s4, 18432
    v_lshrrev_b32 v2, 4, v1
    s_lshl_b32 s5, s3, 2
    v_add_u32 v2, s5, v2           ; t16
    v_and_b32 v3, 15, v1           ; q
    v_mul_u32_u24 v4, 1152, v2
    v_lshl_add_u32 v4, v3, 3, v4
    s_waitcnt lgkmcnt(0)
    """)
    srd(k, 24, 8, 2048 * 576 * 2)
    for i in range(9):
        k(f"buffer_load_dwordx2 {vr(8+2*i,2)}, v4, s[24:27], s36 offen offset:{128*i}")
    srd_ws(k, 28, 20, "XN")
    k("""
    v_lshrrev_b32 v5, 3, v3
    v_lshlrev_b32 v5, 10, v5
    v_bfe_u32 v6, v3, 1, 2
    v_lshl_add_u32 v5, v6, 8, v5
    v_lshl_add_u32 v5, v2, 4, v5
    v_and_b32 v6, 1, v3
    v_lshl_add_u32 v5, v6, 3, v5
    """)
    stamp(k, 2)
    k("s_waitcnt vmcnt(0)")
    stamp(k, 3)
    for i in range(18):
        l = []; unpack(l, 32 + 2 * i, 33 + 2 * i, 8 + i); k.extend(l)
    k("v_pk_add_f32 v[70:71], v[32:33], v[34:35]\nv_pk_add_f32 v[72:73], v[36:37], v[38:39]")
    for i in range(4, 18):
        d = 70 + 2 * (i & 1)
        k(f"v_pk_add_f32 {vr(d,2)}, {vr(d,2)}, {vr(32+2*i,2)}")
    k("v_pk_add_f32 v[70:71], v[70:71], v[72:73]\nv_add_f32 v70, v70, v71")
    for r in (8, 4, 2, 1):
        k(f"v_add_f32_dpp v70, v70, v70 row_ror:{r} row_mask:0xf bank_mask:0xf")
    k(f"v_mul_f32 v70, {fl(-1.0/576)}, v70")
    for i in range(18):
        k(f"v_pk_add_f32 {vr(32+2*i,2)}, {vr(32+2*i,2)}, v[70:71] op_sel_hi:[1,0]")
    k("v_pk_mul_f32 v[72:73], v[32:33], v[32:33]\nv_pk_mul_f32 v[74:75], v[34:35], v[34:35]")
    for i in range(2, 18):
        d = 72 + 2 * (i & 1)
        k(f"v_pk_fma_f32 {vr(d,2)}, {vr(32+2*i,2)}, {vr(32+2*i,2)}, {vr(d,2)}")
    k("v_pk_add_f32 v[72:73], v[72:73], v[74:75]\nv_add_f32 v72, v72, v73")
    for r in (8, 4, 2, 1):
        k(f"v_add_f32_dpp v72, v72, v72 row_ror:{r} row_mask:0xf bank_mask:0xf")
    k(f"v_mov_b32 v73, {fl(1e-5)}\nv_fmac_f32 v73, {fl(1.0/576)}, v72\nv_rsq_f32 v72, v73")
    for i in range(18):
        k(f"v_pk_mul_f32 {vr(32+2*i,2)}, {vr(32+2*i,2)}, v[72:73] op_sel_hi:[1,0]")
    for i in range(18):
        k(f"v_cvt_pk_bf16_f32 v{8+i}, v{32+2*i}, v{33+2*i}")
    for i in range(9):
        k(f"buffer_store_dwordx2 {vr(8+2*i,2)}, v5, s[28:31], s36 offen")
        if i < 8: k("s_add_u32 s36, s36, 2048")
    stamp(k, 4); stamp_end(k, 1, 5)
    k("s_endpgm")

    k.label("wq")
    k(f"""
    s_sub_u32 s4, s2, {NB_MOD + NB_XN}     ; bb
    s_sub_u32 s5, s4, 144
    s_lshl_b32 s5, s5, 2
    s_add_u32 s5, s5, s3
    s_cmp_ge_u32 s4, 144
    s_cselect_b32 s5, s5, s4               ; id18
    s_cselect_b32 s6, 4, s3                ; a
    s_cselect_b32 s38, 0, s3
    s_mul_i32 s7, s5, 3641
    s_lshr_b32 s7, s7, 16                  ; c
    s_mul_i32 s22, s7, 18
    s_sub_u32 s22, s5, s22                 ; step
    v_and_b32 v2, 15, v1                   ; m
    v_lshrrev_b32 v3, 4, v1                ; g
    v_lshrrev_b32 v4, 1, v2
    v_mul_u32_u24 v4, 18, v4
    v_and_b32 v5, 1, v2
    v_add3_u32 v4, v4, v5, 16
    s_cmp_eq_u32 s6, 4
    s_cselect_b64 vcc, -1, 0
    v_cndmask_b32 v4, v2, v4, vcc
    v_lshlrev_b32 v4, 1, v4
    v_mul_u32_u24 v5, {8*1152}, v3
    v_add_u32 v4, v4, v5
    s_lshl_b32 s23, s7, 2
    s_add_u32 s23, s23, s38
    s_mul_i32 s23, s23, 36
    s_mul_i32 s36, s22, {32*1152}
    s_add_u32 s36, s36, s23
    s_add_u32 s37, s36, 4608
    s_waitcnt lgkmcnt(0)
    """)
    srd(k, 24, 10, 576 * 576 * 2)
    for j in range(8):
        k(f"buffer_load_ushort v{8+j}, v4, s[24:27], s{36 + (j >> 2)} offen offset:{(j & 3) * 1152}")
    k(f"s_cmp_lg_u32 s6, 4\ns_cbranch_scc1 {k.lab('wq2')}")
    k("""
    s_cmp_lt_u32 s7, 3
    s_cselect_b32 s40, s12, s14
    s_cselect_b32 s41, s13, s15
    s_cselect_b32 s23, 0, 3
    s_sub_u32 s23, s7, s23          ; cc
    s_lshl_b32 s23, s23, 3
    """)
    srd(k, 28, 40, 576 * 18 * 2)
    k(f"""
    v_add_u32 v6, s23, v2
    v_subrev_u32 v6, 8, v6
    v_min_u32 v6, 17, v6
    v_lshlrev_b32 v6, 1, v6
    v_mul_u32_u24 v7, {8*36}, v3
    v_add_u32 v6, v6, v7
    s_mul_i32 s36, s22, {32*36}
    v_cmp_lt_u32 vcc, 7, v2
    s_and_saveexec_b64 s[42:43], vcc
    """)
    for j in range(8):
        k(f"buffer_load_ushort v{8+j}, v6, s[28:31], s36 offen offset:{j * 36}")
    k("s_mov_b64 exec, s[42:43]")
    k.label("wq2")
    srd_ws(k, 32, 20, "WQT")
    k("""
    s_mul_i32 s36, s5, 5
    s_add_u32 s36, s36, s6
    s_lshl_b32 s36, s36, 10
    v_lshlrev_b32 v6, 4, v1
    s_waitcnt vmcnt(0)
    """)
    for j in range(4):
        k(f"v_lshl_or_b32 v{16+j}, v{9+2*j}, 16, v{8+2*j}")
    stamp(k, 3)
    k("buffer_store_dwordx4 v[16:19], v6, s[32:35], s36 offen")
    stamp(k, 4); stamp_end(k, 4, 5)
    k.label("end")
    k("s_endpgm")
    return k, dict(grid=K1_GRID, block=256, lds=K1_LDS, nvgpr=80)
```

```python
from common import *

K2_LDS = 102400
LA, LB = 94208, 98304

def gen_k2():
    k = K("k2_qkv_kernel")
    k(f"s_cmp_ge_u32 s2, 256\ns_cbranch_scc1 {k.lab('end')}")
    k("s_load_dwordx2 s[20:21], s[0:1], 112")
    stamp_init(k)
    wave_lane(k, 3, 1)
    k("""
    s_and_b32 s4, s2, 7
    s_lshl_b32 s4, s4, 2
    s_bfe_u32 s5, s2, 0x20003
    s_add_u32 s4, s4, s5            ; rb
    s_lshr_b32 s5, s2, 5            ; c
    s_lshl_b32 s6, s4, 2
    s_add_u32 s6, s6, s3            ; T16
    v_lshlrev_b32 v2, 4, v1         ; lane*16
    v_lshlrev_b32 v3, 4, v0         ; tid*16
    v_mov_b32 v4, 0x40000000        ; OOB
    v_cmp_gt_u32 vcc, 144, v0
    v_add_u32 v5, 2304, v3
    v_cndmask_b32 v6, v4, v3, vcc
    v_cndmask_b32 v7, v4, v5, vcc
    s_cmp_lt_u32 s2, 9
    s_cselect_b32 s7, 1, 0
    s_cmp_eq_u32 s3, 3
    s_cselect_b32 s7, s7, 0
    s_lshl_b32 s8, s2, 10
    s_add_u32 s8, s8, 4608
    v_add_u32 v5, s8, v2
    s_cmp_eq_u32 s7, 1
    s_cselect_b64 vcc, -1, 0
    v_cndmask_b32 v6, v6, v5, vcc
    s_waitcnt lgkmcnt(0)
    """)
    srd_ws(k, 24, 20, "MODP")
    srd_ws(k, 28, 20, "XN")
    srd_ws(k, 32, 20, "WQT")
    M0 = 64
    for p in range(NPART):
        k(f"s_mov_b32 s9, {p*13824}")
        k(f"buffer_load_dwordx4 {vr(M0+4*p,4)}, v6, s[24:27], s9 offen")
        k(f"buffer_load_dwordx4 {vr(M0+24+4*p,4)}, v7, s[24:27], s9 offen")
    X0 = 112
    k(f"""
    s_mul_i32 s10, s6, 18432
    s_mul_i32 s11, s5, {90*1024}
    s_lshl_b32 s12, s3, 10
    s_add_u32 s11, s11, s12
    s_mov_b32 m0, s12
    """)
    stages = [(0, 4), (4, 8), (8, 12), (12, 16), (16, 18)]
    nd = [5, 5, 5, 5, 3]
    for st, (s0, s1) in enumerate(stages):
        for s_ in range(s0, s1):
            k(f"buffer_load_dwordx4 {vr(X0+4*s_,4)}, v2, s[28:31], s10 offen offset:{(s_ & 3)*1024}")
        k("s_add_u32 s10, s10, 4096")
        for i in range(nd[st]):
            k("buffer_load_dwordx4 v2, s[32:35], s11 offen lds")
            k("s_add_u32 s11, s11, 4096\ns_add_u32 m0, m0, 4096")
    srd_ws(k, 36, 20, "QM")
    srd_ws(k, 40, 20, "QT")
    srd_ws(k, 44, 20, "KV")
    k("""
    v_and_b32 v8, 15, v1            ; t16
    v_lshrrev_b32 v9, 4, v1         ; g
    s_and_b32 s12, s6, 1
    s_lshl_b32 s12, s12, 4
    v_add_u32 v10, s12, v8          ; t32
    s_lshr_b32 s13, s6, 1           ; T32
    v_lshlrev_b32 v11, 5, v9
    """)
    ACC = 184
    for i in range(20): k(f"v_mov_b32 v{ACC+i}, 0")
    stamp(k, 2)
    k("s_waitcnt vmcnt(41)")
    stamp(k, 3)
    for half in range(2):
        b0 = M0 + 24 * half
        for p in range(1, NPART):
            k(f"v_pk_add_f32 {vr(b0,2)}, {vr(b0,2)}, {vr(b0+4*p,2)}\nv_pk_add_f32 {vr(b0+2,2)}, {vr(b0+2,2)}, {vr(b0+4*p+2,2)}")
    for i in range(4):
        bf16_round(k, M0 + i, M0 + i)
        bf16_round(k, M0 + 24 + i, M0 + 24 + i)
    for i in range(4):
        k(f"v_add_f32 v{M0+24+i}, 1.0, v{M0+24+i}")
    for i in range(4):
        bf16_round(k, M0 + 24 + i, M0 + 24 + i)
    k(f"ds_write_b128 v3, {vr(M0+24,4)} offset:{LA-65536+0}" if False else f"v_add_u32 v12, {LA}, v3\nds_write_b128 v12, {vr(M0+24,4)}\nds_write_b128 v12, {vr(M0,4)} offset:{LB-LA}")
    k(f"v_add_u32 v11, {LA}, v11\nv_add_u32 v13, 49152, v2")
    WF = [204, 224]; AB = [16, 32]; T = 48; H = [56, 60]
    def reads(s_):
        l = []
        p = s_ & 1
        for i in range(2):
            l.append(f"ds_read_b128 {vr(AB[p]+4*i,4)}, v11 offset:{s_*128+16*i}")
        for i in range(2):
            l.append(f"ds_read_b128 {vr(AB[p]+8+4*i,4)}, v11 offset:{LB-LA+s_*128+16*i}")
        for t in range(5):
            off = (s_ * 5 + t) * 1024
            if off < 49152: l.append(f"ds_read_b128 {vr(WF[p]+4*t,4)}, v2 offset:{off}")
            else: l.append(f"ds_read_b128 {vr(WF[p]+4*t,4)}, v13 offset:{off-49152}")
        return l
    rem = 41
    for st, (s0, s1) in enumerate(stages):
        rem -= (s1 - s0) + nd[st]
        k(f"s_waitcnt vmcnt({rem}) lgkmcnt(0)\ns_barrier")
        stamp(k, 4 + st)
        k.extend(reads(s0))
        for s_ in range(s0, s1):
            p = s_ & 1
            if s_ + 1 < s1:
                k.extend(reads(s_ + 1)); k("s_waitcnt lgkmcnt(14)")
            else:
                k("s_waitcnt lgkmcnt(5)")
            l = []
            for j in range(4): unpack(l, T + 2 * j, T + 2 * j + 1, X0 + 4 * s_ + j)
            for j in range(4):
                l.append(f"v_pk_fma_f32 {vr(T+2*j,2)}, {vr(T+2*j,2)}, {vr(AB[p]+2*j,2)}, {vr(AB[p]+8+2*j,2)}")
            for j in range(4):
                l.append(f"v_cvt_pk_bf16_f32 v{H[p]+j}, v{T+2*j}, v{T+2*j+1}")
            k.extend(l)
            k(f"s_waitcnt lgkmcnt({9 if s_ + 1 < s1 else 0})")
            for t in range(5):
                k(f"v_mfma_f32_16x16x32_bf16 {vr(ACC+4*t,4)}, {vr(WF[p]+4*t,4)}, {vr(H[p],4)}, {vr(ACC+4*t,4)}")
    stamp(k, 9)
    k(f"""
    v_lshrrev_b32 v14, 1, v9
    v_lshlrev_b32 v14, 9, v14
    v_lshl_add_u32 v14, v10, 4, v14
    v_and_b32 v15, 1, v9
    v_lshl_add_u32 v14, v15, 3, v14
    s_lshl_b32 s14, s13, 5
    s_lshl_b32 s15, s5, 2
    s_add_u32 s14, s14, s15              ; T32*32 + 4c
    s_lshl_b32 s15, s14, 10
    s_lshl_b32 s16, s14, 7
    v_mov_b32 v16, {fl(QSCALE)}
    v_cmp_gt_u32 vcc, 32, v1
    v_cndmask_b32 v17, 1.0, v16, vcc
    v_lshlrev_b32 v18, 8, v9
    v_lshl_add_u32 v18, v10, 2, v18
    """)
    for t in range(4):
        k(f"v_pk_mul_f32 {vr(ACC+4*t,2)}, {vr(ACC+4*t,2)}, v[16:17] op_sel_hi:[1,0]\nv_pk_mul_f32 {vr(ACC+4*t+2,2)}, {vr(ACC+4*t+2,2)}, v[16:17] op_sel_hi:[1,0]")
        k(f"v_cvt_pk_bf16_f32 v{20+2*t}, v{ACC+4*t}, v{ACC+4*t+1}\nv_cvt_pk_bf16_f32 v{21+2*t}, v{ACC+4*t+2}, v{ACC+4*t+3}")
        k(f"buffer_store_dwordx2 {vr(20+2*t,2)}, v14, s[36:39], s15 offen offset:{t*1024}")
    for i in range(4): k(f"v_mul_f32 v{ACC+16+i}, v17, v{ACC+16+i}")
    k(f"v_cvt_pk_bf16_f32 v28, v{ACC+16}, v{ACC+17}\nv_cvt_pk_bf16_f32 v29, v{ACC+18}, v{ACC+19}")
    k("""
    s_mov_b32 exec_hi, 0
    buffer_store_dword v28, v18, s[40:43], s16 offen
    buffer_store_dword v29, v18, s[40:43], s16 offen offset:128
    s_mov_b32 exec_hi, -1
    s_mov_b32 exec_lo, 0
    s_cmp_ge_u32 s5, 6
    """)
    k(f"s_cbranch_scc1 {k.lab('fin')}\ns_cmp_ge_u32 s5, 3\ns_cbranch_scc1 {k.lab('vpart')}\ns_cmp_eq_u32 s5, 2\ns_cbranch_scc1 {k.lab('ktail')}")
    k(f"""
    v_lshlrev_b32 v19, 4, v10
    v_lshl_add_u32 v19, v15, 3, v19
    s_lshl_b32 s17, s13, 10
    s_lshl_b32 s18, s5, 9
    s_add_u32 s17, s17, s18
    buffer_store_dwordx2 v[28:29], v19, s[44:47], s17 offen
    s_branch {k.lab('fin')}
    """)
    k.label("ktail")
    k(f"""
    s_mov_b32 exec_hi, 0xffff
    v_lshlrev_b32 v19, 2, v8
    s_lshl_b32 s17, s6, 6
    s_add_u32 s17, s17, {KV_KT}
    buffer_store_dword v28, v19, s[44:47], s17 offen
    s_branch {k.lab('fin')}
    """)
    k.label("vpart")
    k(f"""
    v_bfe_u32 v19, v8, 2, 1
    v_mul_u32_u24 v19, 304, v19
    v_and_b32 v30, 3, v8
    v_lshl_add_u32 v19, v30, 1, v19
    v_lshrrev_b32 v30, 3, v8
    v_lshl_add_u32 v19, v30, 3, v19
    v_lshl_add_u32 v19, v15, 6, v19
    s_mul_i32 s17, s6, 608
    s_sub_u32 s18, s5, 3
    s_lshl_b32 s18, s18, 7
    s_add_u32 s17, s17, s18
    s_add_u32 s17, s17, {KV_V}
    s_cmp_eq_u32 s5, 5
    s_cbranch_scc1 {k.lab('vtail')}
    buffer_store_short v28, v19, s[44:47], s17 offen
    buffer_store_short_d16_hi v28, v19, s[44:47], s17 offen offset:16
    buffer_store_short v29, v19, s[44:47], s17 offen offset:32
    buffer_store_short_d16_hi v29, v19, s[44:47], s17 offen offset:48
    s_branch {k.lab('fin')}
    """)
    k.label("vtail")
    k("""
    s_mov_b32 exec_hi, 0xffff
    v_mov_b32 v29, 0x3f80
    buffer_store_short v28, v19, s[44:47], s17 offen
    buffer_store_short_d16_hi v28, v19, s[44:47], s17 offen offset:16
    buffer_store_short v29, v19, s[44:47], s17 offen offset:32
    """)
    k.label("fin")
    stamp(k, 10); stamp_end(k, 2, 11)
    k(f"s_mov_b64 exec, -1\ns_cmp_eq_u32 s7, 0\ns_cbranch_scc1 {k.lab('end')}")
    srd_ws(k, 24, 20, "MODF")
    srd_ws(k, 28, 20, "ABF")
    k(f"""
    s_lshl_b32 s8, s2, 6
    v_add_u32 v2, s8, v1                 ; Q
    v_mul_u32_u24 v3, 911, v2
    v_lshrrev_b32 v3, 17, v3             ; seg = Q/144
    v_mul_u32_u24 v4, 144, v3
    v_sub_u32 v4, v2, v4
    v_cmp_eq_u32 vcc, 2, v3
    v_cndmask_b32 v5, 0, 1.0, vcc
    """)
    for i in range(4): k(f"v_add_f32 v{64+i}, v5, v{64+i}")
    k("v_cvt_pk_bf16_f32 v68, v64, v65\nv_cvt_pk_bf16_f32 v69, v66, v67")
    l = []; unpack(l, 64, 65, 68); unpack(l, 66, 67, 69); k.extend(l)
    k(f"""
    v_lshlrev_b32 v6, 4, v2
    v_add_u32 v6, 4608, v6
    buffer_store_dwordx4 v[64:67], v6, s[24:27], 0 offen
    v_mul_u32_u24 v7, 3641, v4
    v_lshrrev_b32 v7, 16, v7
    v_mul_u32_u24 v8, 18, v7
    v_sub_u32 v8, v4, v8                 ; rq = r/4 (0..17)
    v_lshrrev_b32 v9, 3, v8
    v_lshlrev_b32 v9, 2, v9
    v_and_b32 v10, 3, v8
    v_add_u32 v9, v9, v10                ; chunk (r<64)
    v_bfe_u32 v10, v8, 2, 1              ; j0/4
    v_cmp_lt_u32 vcc, 15, v8
    v_and_b32 v11, 1, v8
    v_cndmask_b32 v9, v9, 8, vcc
    v_cndmask_b32 v10, v10, v11, vcc
    v_mad_u32_u24 v9, v7, 9, v9          ; id
    v_lshlrev_b32 v9, 5, v9
    v_lshl_add_u32 v9, v10, 3, v9
    v_sub_u32 v10, 2, v3
    v_lshl_add_u32 v9, v10, 4, v9
    v_cmp_gt_u32 vcc, 2, v10
    v_mov_b32 v11, 0x40000000
    v_cndmask_b32 v9, v11, v9, vcc
    buffer_store_dwordx2 v[68:69], v9, s[28:31], 0 offen
    """)
    k.label("end")
    k("s_endpgm")
    return k, dict(grid=256, block=256, lds=K2_LDS, nvgpr=248)
```

```python
import sys, importlib
from common import *
import k1, k2
NAME = "adaLN_cond__grouped_kv_mqa__mixer_gmlp__prompt"
def build(kernels, verbose=False):
    ref = open(f"cdna_kernels/{NAME}.s.ref").read().split("\n")
    hdr = [l for l in ref if l.startswith(";") and "@launch" not in l and "Override launch" not in l and "grid=ceil" not in l]
    launches = []; texts = []; descs = []
    for g in kernels:
        k, cfg = g()
        t, d, n = kernel_text(k, cfg["nvgpr"], accum=cfg.get("accum"), verbose=verbose)
        launches.append(f"; @launch kernel={k.name} grid=({cfg['grid']},1,1) block=({cfg['block']},1,1) lds={cfg['lds']}")
        texts.append(t); descs.append(d)
        print(f"{k.name}: {len(k.L)} lines, {n} nop states added", file=sys.stderr)
    return "\n".join(hdr + launches) + '\n.amdgcn_target "amdgcn-amd-amdhsa--gfx950"\n' + "".join(texts) + "".join(descs)
if __name__ == "__main__":
    ks = [k1.gen_k1, k2.gen_k2]
    for name in ("k3", "k4", "k5", "k6", "k7"):
        try:
            m = importlib.import_module(name); ks.append(getattr(m, "gen_" + name))
        except ModuleNotFoundError: pass
    args = [a for a in sys.argv[1:] if not a.startswith("-")]
    out = args[0] if args else f"cdna_kernels/{NAME}.s"
    open(out, "w").write(build(ks, verbose="-v" in sys.argv))
```
